```python
import torch

def _softmax(x, axis=-1):
    return torch.softmax(x, dim=axis)
def _gelu(x):
    return torch.nn.functional.gelu(x, approximate="tanh")
def _silu(x):
    return torch.nn.functional.silu(x)
def _sigmoid(x):
    return torch.sigmoid(x)
def _layernorm(x, axis=-1, eps=1e-5):
    m = x.mean(dim=axis, keepdim=True)
    v = x.var(dim=axis, keepdim=True, unbiased=False)
    return (x - m) / torch.sqrt(v + eps)
def _scatter_add(tgt, idx, src, axis=0):
    return tgt.clone().index_add_(axis, idx, src)
def _segment_sum(src, seg, n):
    out = torch.zeros((n,) + src.shape[1:], dtype=src.dtype)
    return out.index_add_(0, seg, src)
def _pad(x, pw):
    flat = tuple(v for pair in reversed(pw) for v in pair)
    return torch.nn.functional.pad(x, flat)

kernel_name = 'standalone__sliding_local_strided__prompt'

def setup_inputs():

    _w = (lambda a: (lambda t: t.to(torch.bfloat16) if t.is_floating_point() else t)(torch.as_tensor(a)))
    B, H, S, D = 1, 32, 2048, 192
    return {
        "q": _w((lambda *s: torch.randn(*s, dtype=torch.bfloat16) * 0.8)(B, H, S, D)),
        "k": _w((lambda *s: torch.randn(*s, dtype=torch.bfloat16) * 0.8)(B, H, S, D)),
        "v": _w((lambda *s: torch.randn(*s, dtype=torch.bfloat16) * 0.05)(B, H, S, D)),
    }

def reference(q, k, v):
    B, H, S, D = q.shape
    W, dil = 8, 4
    scale = D ** -0.5
    pos = torch.arange(S)
    kidx = pos[:, None] - torch.arange(W)[None, :] * dil
    valid = kidx >= 0
    kidx = torch.where(valid, kidx, torch.zeros_like(kidx))
    idx = torch.reshape(kidx, (1, 1, S * W, 1))
    idx = (lambda x, n, axis: torch.repeat_interleave(x, n, dim=axis))(idx, B, 0)
    idx = (lambda x, n, axis: torch.repeat_interleave(x, n, dim=axis))(idx, H, 1)
    idx = (lambda x, n, axis: torch.repeat_interleave(x, n, dim=axis))(idx, D, 3)
    kg = torch.reshape((lambda x, i, axis: torch.take_along_dim(x, i, dim=axis))(k, idx, 2), (B, H, S, W, D))
    vg = torch.reshape((lambda x, i, axis: torch.take_along_dim(x, i, dim=axis))(v, idx, 2), (B, H, S, W, D))
    scores = torch.einsum("bhsd,bhswd->bhsw", q, kg) * scale
    mask_f = (lambda x, dt: x.to(dt))(valid, q.dtype)[None, None, :, :]
    scores = scores + (mask_f - 1.0) * 1e9
    p = _softmax(scores, axis=-1)
    return torch.einsum("bhsw,bhswd->bhsd", p, vg)
```

```python
import sys

NAME = "standalone__sliding_local_strided__prompt"
L = []
def e(s): L.append("    " + s)
def lab(s): L.append(s + ":")
def c(s): L.append("    ; " + s)
def vr(b, n): return f"v[{b}:{b+n-1}]"

opts = dict(a.split("=") for a in sys.argv[2:])
LDQ = opts.get("ldq", "nt")
LDK = opts.get("ldk", "nt")
LDH = opts.get("ldh", "")
STO = opts.get("sto", "nt")
BARPOS = opts.get("barpos", "v")
NOBAR = int(opts.get("nobar", "0"))
STWIN = int(opts.get("stwin", "0"))
WGEN = int(opts.get("wgen", "4"))
STO3 = opts.get("sto3", STO)
DSRD = int(opts.get("dsrd", "0"))
XS = int(opts.get("xs", "0"))
XSPOS = opts.get("xspos", "issue")
XSTO = int(opts.get("xsto", "24"))
XSLD = opts.get("xsld", "sc1")
EG0 = int(opts.get("eg0", "0"))

NB = 25165824
RSZ = 39936
FLAGS = 4 * RSZ
LDSB = 160000
sQ, sK, sV, sO = 12, 16, 20, 24
s_w, s_cidx, s_rb, s_offA, s_offB, s_offC, s_hmask, s_j = 28, 29, 30, 31, 32, 33, 34, 35
s_tmp, s_r, s_work, s_hikp, s_hivo, s_hiko, s_hivp, s_t2 = 36, 37, 38, 39, 58, 59, 60, 61
sM = 40
s_scale, s_log2e = 56, 57
v_l, v_G, v_GH, v_l16, v_fr, v_tr, v_ow, v_fl = 1, 2, 3, 4, 5, 6, 7, 8
A0, A1, B0, B1 = 9, 10, 11, 12
tp = 13
P = 16
S = 20
t0, t1, t2, t3 = 28, 29, 30, 31
KS, QS, VS, HR = 32, 56, 80, 104
SA, SB = S, S + 4
def KB(t): return KS + 4 * t
def KA(t): return HR + 4 * t
def QF(t): return QS + 4 * t
def VT(T): return VS + 4 * T
def OA(T): return KS + 4 * T

hdr = f"""; sliding-window (W=8, dilation 4) attention, bf16, B1 H32 S2048 D192 -- generated by gen2.py
; @launch grid=(256,1,1) block=(1024,1,1) lds={LDSB}
.amdgcn_target "amdgcn-amd-amdhsa--gfx950"
.text
.globl {NAME}_kernel
.p2align 8
.type {NAME}_kernel,@function
{NAME}_kernel:"""

e("s_cmp_ge_u32 s2, 256")
e("s_cbranch_scc1 L_end")
L.append(";STAMP 0")
if DSRD:
    e(f"s_load_dwordx2 s[{sK}:{sK+1}], s[0:1], 8")
    e(f"s_load_dwordx2 s[{sV}:{sV+1}], s[0:1], 16")
    e(f"s_load_dwordx2 s[{sQ}:{sQ+1}], s[0:1], 0")
    e(f"s_load_dwordx2 s[{sO}:{sO+1}], s[0:1], 24")
    for srd in (sK, sV, sQ, sO):
        e(f"s_mov_b32 s{srd+2}, {NB}")
        e(f"s_mov_b32 s{srd+3}, 0x00020000")
else:
    e("s_load_dwordx8 s[4:11], s[0:1], 0")
e(f"v_lshrrev_b32 v{v_G}, 6, v0")
e(f"v_and_b32 v{v_l}, 63, v0")
e(f"v_readfirstlane_b32 s{s_w}, v{v_G}")
if XS:
    e("s_load_dwordx2 s[64:65], s[0:1], 32")
    e("s_mov_b32 s66, 256")
    e("s_mov_b32 s67, 0x00020000")
c("zero this wave's hand-off flags")
e(f"v_lshlrev_b32 v{v_fl}, 3, v{v_G}")
e(f"v_add_u32 v{v_fl}, {FLAGS}, v{v_fl}")
e(f"v_mov_b32 v{t0}, 0")
e(f"v_mov_b32 v{t1}, 0")
e(f"ds_write_b64 v{v_fl}, {vr(t0,2)}")
if XS:
    e(f"v_mov_b32 v{t2}, {FLAGS+128}")
    e(f"ds_write_b32 v{t2}, v{t0}")
c("tile index: ((b&7)*32 + (b>>3))*4 + j")
e(f"s_and_b32 s{s_cidx}, s2, 7")
e(f"s_lshl_b32 s{s_cidx}, s{s_cidx}, 5")
e(f"s_lshr_b32 s{s_tmp}, s2, 3")
e(f"s_add_u32 s{s_cidx}, s{s_cidx}, s{s_tmp}")
e(f"s_lshl_b32 s{s_cidx}, s{s_cidx}, 2")
e(f"s_lshr_b32 s{s_j}, s{s_w}, 2")
e(f"s_and_b32 s{s_r}, s{s_w}, 3")
e(f"s_add_u32 s{s_cidx}, s{s_cidx}, s{s_j}")
e(f"s_and_b32 s{s_rb}, s{s_cidx}, 31")
e(f"s_mul_i32 s{s_offB}, s{s_cidx}, 24576")
e(f"s_mul_i32 s{s_tmp}, s{s_r}, 384")
e(f"s_add_u32 s{s_offB}, s{s_offB}, s{s_tmp}")
e(f"s_add_u32 s{s_offC}, s{s_offB}, 12288")
e(f"s_sub_u32 s{s_offA}, s{s_offB}, 12288")
e(f"s_cmp_eq_u32 s{s_rb}, 0")
e(f"s_cselect_b32 s{s_offA}, s{s_offB}, s{s_offA}")
e(f"s_cselect_b32 s{s_hmask}, 64, 8")
e(f"v_lshrrev_b32 v{t2}, 3, v{v_l}")
e(f"v_and_b32 v{t3}, 7, v{v_l}")
e(f"v_and_b32 v{A0}, 6, v{t2}")
e(f"v_xor_b32 v{A0}, v{A0}, v{t3}")
e(f"v_lshlrev_b32 v{A0}, 4, v{A0}")
e(f"v_mul_u32_u24 v{A1}, 1536, v{t2}")
e(f"v_add_u32 v{v_G}, v{A1}, v{A0}")
e(f"v_cmp_gt_u32 vcc, s{s_hmask}, v{v_l}")
e(f"v_or_b32 v{v_GH}, 0x40000000, v{v_G}")
e(f"v_lshlrev_b32 v{v_l16}, 4, v{v_l}")
e(f"v_cndmask_b32 v{v_GH}, v{v_G}, v{v_GH}, vcc")
e("s_waitcnt lgkmcnt(0)")
if not EG0: e("s_barrier")
for (srd, p) in (() if DSRD else ((sK, 6), (sV, 8), (sQ, 4), (sO, 10))):
    e(f"s_mov_b32 s{srd}, s{p}")
    e(f"s_and_b32 s{srd+1}, s{p+1}, 0xffff")
    e(f"s_mov_b32 s{srd+2}, {NB}")
    e(f"s_mov_b32 s{srd+3}, 0x00020000")
soff = [s_offA, s_offB, s_offC]
def ld(dst, va, srd, so, off, fl):
    o = f" offset:{off}" if off else ""
    e(f"buffer_load_dwordx4 {vr(dst,4)}, v{va}, s[{srd}:{srd+3}], s{so} offen{o} {fl}".rstrip())
e(f"s_cmp_eq_u32 s{s_j}, 0")
e("s_cbranch_scc1 L_halo")
if EG0: e("s_barrier")
e("s_branch L_nohalo")
lab("L_halo")
for a in range(3): ld(HR + 4 * a, v_GH, sK, soff[0], a * 128, LDH)
for a in range(3): ld(HR + 12 + 4 * a, v_GH, sV, soff[0], a * 128, LDH)
lab("L_nohalo")
for (R, srd, fl) in ((KS, sK, LDK), (QS, sQ, LDQ), (VS, sV, LDK)):
    for b in range(2):
        for a in range(3):
            ld(R + 4 * (3 * b + a), v_G, srd, soff[b + 1], a * 128, fl)
if EG0:
    e(f"s_cmp_lg_u32 s{s_j}, 0")
    e("s_cbranch_scc1 L_eg0")
    e("s_barrier")
    lab("L_eg0")
L.append(";STAMP 1")
def gen3_count():
    e(f"s_cmp_lg_u32 s{s_j}, 3")
    e(f"s_cbranch_scc1 L_nc")
    e(f"v_mov_b32 v{tp}, {FLAGS+128}")
    e(f"v_mov_b32 v{tp+1}, 1")
    e("s_mov_b64 exec, 1")
    e(f"ds_add_u32 v{tp}, v{tp+1}")
    e("s_mov_b64 exec, -1")
    lab("L_nc")
if XS and XSPOS == "issue": gen3_count()
nbar = [0]
def gen3_barrier():
    if NOBAR: return
    n = nbar[0]; nbar[0] += 1
    e(f"s_cmp_lg_u32 s{s_j}, 3")
    e(f"s_cbranch_scc1 L_nb{n}")
    e("s_barrier")
    lab(f"L_nb{n}")
if BARPOS == "issue": gen3_barrier()
c("LDS area bases")
e(f"s_mul_i32 s{s_tmp}, s{s_r}, {RSZ}")
e(f"s_mul_i32 s{s_t2}, s{s_j}, 3072")
e(f"s_add_u32 s{s_hikp}, s{s_tmp}, s{s_t2}")
e(f"s_add_u32 s{s_hiko}, s{s_hikp}, 3072")
e(f"s_add_u32 s{s_work}, s{s_hikp}, 27648")
e(f"s_sub_u32 s{s_hivo}, s{s_tmp}, s{s_t2}")
e(f"s_add_u32 s{s_hivo}, s{s_hivo}, {7*3072}")
e(f"s_add_u32 s{s_hivp}, s{s_hivo}, 3072")
vg, vm = S, S + 1
e(f"v_lshrrev_b32 v{vg}, 4, v{v_l}")
e(f"v_and_b32 v{vm}, 15, v{v_l}")
c("fr = (m&7)*128 + ((g ^ (m&6))*16)")
e(f"v_and_b32 v{t0}, 7, v{vm}")
e(f"v_lshlrev_b32 v{t0}, 7, v{t0}")
e(f"v_and_b32 v{t1}, 6, v{vm}")
e(f"v_xor_b32 v{t1}, v{t1}, v{vg}")
e(f"v_lshl_add_u32 v{v_fr}, v{t1}, 4, v{t0}")
c("ow = WORK + (n>>3)*1024 + (n&7)*128 + ((g ^ (n&7))*16)")
e(f"v_and_b32 v{t1}, 7, v{vm}")
e(f"v_xor_b32 v{t1}, v{t1}, v{vg}")
e(f"v_lshl_add_u32 v{v_ow}, v{t1}, 4, v{t0}")
e(f"v_lshrrev_b32 v{t1}, 3, v{vm}")
e(f"v_lshlrev_b32 v{t1}, 10, v{t1}")
e(f"v_add3_u32 v{v_ow}, v{v_ow}, v{t1}, s{s_work}")
c("tr = (row&7)*128 + ((c ^ (row&6))*16), row = l>>2, c = l&3")
e(f"v_lshrrev_b32 v{t2}, 2, v{v_l}")
e(f"v_and_b32 v{t0}, 7, v{t2}")
e(f"v_lshlrev_b32 v{t0}, 7, v{t0}")
e(f"v_and_b32 v{t1}, 6, v{t2}")
e(f"v_and_b32 v{t3}, 3, v{v_l}")
e(f"v_xor_b32 v{t1}, v{t1}, v{t3}")
e(f"v_lshl_add_u32 v{v_tr}, v{t1}, 4, v{t0}")
c("store offsets: hi3*1536 + ((lo3 ^ hi3)*16) = vG ^ ((hi3&1)*16)")
e(f"v_and_b32 v{t0}, 8, v{v_l}")
e(f"v_lshlrev_b32 v{t0}, 1, v{t0}")
e(f"v_xor_b32 v{v_G}, v{v_G}, v{t0}")
c("masks: dlt = n - 4g ; B valid: (u)(dlt-e) <= 7 ; A valid: (u)(dlt+8-e) <= 7 and g<=1 and rb>0")
e(f"v_lshlrev_b32 v{t0}, 2, v{vg}")
e(f"v_sub_u32 v{t0}, v{vm}, v{t0}")
e(f"v_add_u32 v{t1}, 8, v{t0}")
e(f"s_cmp_eq_u32 s{s_rb}, 0")
e(f"s_cselect_b32 s{s_tmp}, 0, 32")
e(f"v_cmp_gt_u32 vcc, s{s_tmp}, v{v_l}")
e(f"v_mov_b32 v{t2}, 1000")
e(f"s_mov_b32 s{s_scale}, 0x3d93cd3a")
e(f"v_cndmask_b32 v{t1}, v{t2}, v{t1}, vcc")
for ee in range(4):
    e(f"v_subrev_u32 v{t2}, {ee}, v{t1}")
    e(f"v_cmp_ge_u32 s[{sM+2*ee}:{sM+2*ee+1}], 7, v{t2}")
    e(f"v_subrev_u32 v{t3}, {ee}, v{t0}")
    e(f"v_cmp_ge_u32 s[{sM+8+2*ee}:{sM+8+2*ee+1}], 7, v{t3}")
e(f"s_mov_b32 s{s_log2e}, 0x3fb8aa3b")
c("K tile B fragment addresses: (m<8 ? WORK : HIK_own) + fr")
e(f"v_cmp_gt_u32 vcc, 8, v{vm}")
e(f"v_mov_b32 v{t0}, s{s_hiko}")
e(f"v_mov_b32 v{t1}, s{s_work}")
e(f"v_cndmask_b32 v{t0}, v{t0}, v{t1}, vcc")
e(f"v_add_u32 v{B0}, v{t0}, v{v_fr}")
e(f"v_xor_b32 v{B1}, 64, v{B0}")
e(f"v_add_u32 v{A0}, s{s_hikp}, v{v_l16}")
e(f"v_add_u32 v{A1}, s{s_work}, v{v_l16}")
e(f"v_add_u32 v{t2}, s{s_hivo}, v{v_l16}")
e(f"v_mov_b32 v{t3}, 1")
c("halo -> LDS (generation 0 only)")
e(f"s_cmp_lg_u32 s{s_j}, 0")
e("s_cbranch_scc1 L_nohalo2")
e("s_waitcnt vmcnt(18)")
for a in range(3): e(f"ds_write_b128 v{A0}, {vr(HR+4*a,4)} offset:{a*1024}")
for a in range(3): e(f"ds_write_b128 v{t2}, {vr(HR+12+4*a,4)} offset:{3072+a*1024}")
lab("L_nohalo2")
c("K -> LDS -> fragments")
for i in range(6):
    e(f"s_waitcnt vmcnt({17 - i})")
    if i < 3: e(f"ds_write_b128 v{A1}, {vr(KS+4*i,4)} offset:{i*1024}")
    else:     e(f"ds_write_b128 v{A0}, {vr(KS+4*i,4)} offset:{3072+(i-3)*1024}")
e(f"ds_write_b32 v{v_fl}, v{t3}")
L.append(";STAMP 2")
if XS and XSPOS == "k": gen3_count()
if BARPOS == "k": gen3_barrier()
for t in range(6):
    e(f"ds_read_b128 {vr(KB(t),4)}, v{B1 if t&1 else B0} offset:{(t>>1)*1024}")
c("Q fragment addresses: WORK + (m>>3)*1024 + fr")
e(f"v_and_b32 v{t0}, 8, v{v_l}")
e(f"v_lshlrev_b32 v{t0}, 7, v{t0}")
e(f"v_add3_u32 v{B0}, v{t0}, v{v_fr}, s{s_work}")
e(f"v_xor_b32 v{B1}, 64, v{B0}")
c("Q -> LDS -> fragments, three column blocks through the work area")
def QFr(t): return QS + 4 * ((t >> 1) + 3 * (t & 1))
for a in range(3):
    e(f"s_waitcnt vmcnt({11 - a})")
    e(f"ds_write_b128 v{A1}, {vr(QS+4*a,4)}")
    e(f"s_waitcnt vmcnt({8 - a})")
    e(f"ds_write_b128 v{A1}, {vr(QS+4*(3+a),4)} offset:1024")
    e(f"ds_read_b128 {vr(QFr(2*a),4)}, v{B0}")
    e(f"ds_read_b128 {vr(QFr(2*a+1),4)}, v{B1}")
c("wait for the previous generation's K rows")
e(f"v_add_u32 v{B0}, s{s_hikp}, v{v_fr}")
e(f"v_xor_b32 v{B1}, 64, v{B0}")
def flagwait(name, off):
    e(f"s_cmp_eq_u32 s{s_j}, 0")
    e(f"s_cbranch_scc1 {name}_ok")
    e(f"v_subrev_u32 v{t0}, 32, v{v_fl}")
    lab(name)
    e(f"ds_read_b32 v{t1}, v{t0} offset:{off}")
    e("s_waitcnt lgkmcnt(0)")
    e(f"v_readfirstlane_b32 s{s_tmp}, v{t1}")
    e(f"s_cmp_eq_u32 s{s_tmp}, 0")
    e(f"s_cbranch_scc1 {name}")
    lab(name + "_ok")
flagwait("L_wk", 0)
for t in range(6):
    e(f"ds_read_b128 {vr(KA(t),4)}, v{B1 if t&1 else B0} offset:{(t>>1)*1024}")
e("s_waitcnt lgkmcnt(6)")
for t in range(6):
    e(f"v_mfma_f32_16x16x32_bf16 {vr(SB,4)}, {vr(KB(t),4)}, {vr(QFr(t),4)}, {'0' if t==0 else vr(SB,4)}")
for t in range(6):
    e(f"s_waitcnt lgkmcnt({5 - t})")
    e(f"v_mfma_f32_16x16x32_bf16 {vr(SA,4)}, {vr(KA(t),4)}, {vr(QFr(t),4)}, {'0' if t==0 else vr(SA,4)}")
if BARPOS == "v": gen3_barrier()
c("V tile B transposed-read addresses: (row<8 ? WORK : HIV_own) + tr ; row<8 <=> lane<32")
e(f"v_cmp_gt_u32 vcc, 32, v{v_l}")
e(f"v_mov_b32 v{t0}, s{s_hivo}")
e(f"v_mov_b32 v{t1}, s{s_work}")
e(f"v_cndmask_b32 v{t0}, v{t0}, v{t1}, vcc")
e(f"v_add_u32 v{B0}, v{t0}, v{v_tr}")
e(f"v_xor_b32 v{B1}, 64, v{B0}")
e(f"v_add_u32 v{A0}, s{s_hivp}, v{v_tr}")
c("V -> LDS -> transposed fragments")
for i in range(6):
    e(f"s_waitcnt vmcnt({5 - i})")
    if i < 3: e(f"ds_write_b128 v{A1}, {vr(VS+4*i,4)} offset:{i*1024}")
    else:     e(f"ds_write_b128 v{t2}, {vr(VS+4*i,4)} offset:{(i-3)*1024}")
e(f"ds_write_b32 v{v_fl}, v{t3} offset:4")
L.append(";STAMP 3")
if BARPOS == "end": gen3_barrier()
e(f"v_xor_b32 v{t2}, 64, v{A0}")
for T in range(12):
    u, hh = T >> 1, T & 1
    e(f"ds_read_b64_tr_b16 {vr(VT(T)+2,2)}, v{B1 if u&1 else B0} offset:{(u>>1)*1024+hh*8}")
flagwait("L_wv", 4)
for T in range(12):
    u, hh = T >> 1, T & 1
    e(f"ds_read_b64_tr_b16 {vr(VT(T),2)}, v{t2 if u&1 else A0} offset:{(u>>1)*1024+hh*8}")
c("softmax (scores rounded to bf16 as the reference does)")
for rnd in range(2):
    for j in range(4):
        e(f"v_cvt_pk_bf16_f32 v{P+j}, v{S+2*j}, v{S+2*j+1}")
    for j in range(4):
        e(f"v_lshlrev_b32 v{S+2*j}, 16, v{P+j}")
        e(f"v_and_b32 v{S+2*j+1}, 0xffff0000, v{P+j}")
    if rnd == 0:
        for j in range(8):
            e(f"v_mul_f32 v{S+j}, s{s_scale}, v{S+j}")
e(f"v_mov_b32 v{tp}, 0xff800000")
for j in range(8):
    e(f"v_cndmask_b32 v{S+j}, v{tp}, v{S+j}, s[{sM+2*j}:{sM+2*j+1}]")
e(f"v_max3_f32 v{tp}, v{S}, v{S+1}, v{S+2}")
e(f"v_max3_f32 v{tp+1}, v{S+3}, v{S+4}, v{S+5}")
e(f"v_max3_f32 v{tp}, v{tp}, v{S+6}, v{S+7}")
e(f"v_max_f32 v{tp}, v{tp}, v{tp+1}")
def xlane(op):
    for sw in ("v_permlane16_swap_b32", "v_permlane32_swap_b32"):
        e(f"v_mov_b32 v{tp+1}, v{tp}")
        e("s_nop 1")
        e(f"{sw} v{tp}, v{tp+1}")
        e("s_nop 1")
        e(f"{op} v{tp}, v{tp}, v{tp+1}")
xlane("v_max_f32")
for j in range(8):
    e(f"v_sub_f32 v{S+j}, v{S+j}, v{tp}")
for j in range(8):
    e(f"v_mul_f32 v{S+j}, s{s_log2e}, v{S+j}")
for j in range(8):
    e(f"v_exp_f32 v{S+j}, v{S+j}")
e("s_nop 0")
e(f"v_add_f32 v{tp}, v{S}, v{S+1}")
e(f"v_add_f32 v{tp+1}, v{S+2}, v{S+3}")
e(f"v_add_f32 v{tp+2}, v{S+4}, v{S+5}")
e(f"v_add_f32 v{t0}, v{S+6}, v{S+7}")
e(f"v_add_f32 v{tp}, v{tp}, v{tp+1}")
e(f"v_add_f32 v{tp+2}, v{tp+2}, v{t0}")
e(f"v_add_f32 v{tp}, v{tp}, v{tp+2}")
xlane("v_add_f32")
e(f"v_rcp_f32 v{tp}, v{tp}")
e("s_nop 0")
for j in range(8):
    e(f"v_mul_f32 v{S+j}, v{S+j}, v{tp}")
for j in range(4):
    e(f"v_cvt_pk_bf16_f32 v{P+j}, v{S+2*j}, v{S+2*j+1}")
e(f"v_xor_b32 v{B1}, 64, v{v_ow}")
e("s_nop 0")
if BARPOS == "pv": gen3_barrier()
c("PV")
for T in range(12):
    e(f"s_waitcnt lgkmcnt({11 - T})")
    e(f"v_mfma_f32_16x16x32_bf16 {vr(OA(T),4)}, {vr(VT(T),4)}, {vr(P,4)}, 0")
e("s_nop 7")
c("pack, transpose through the work area")
for a in range(3):
    for u in (2 * a, 2 * a + 1):
        x, y = OA(2 * u), OA(2 * u + 1)
        e(f"v_cvt_pk_bf16_f32 v{x}, v{x}, v{x+1}")
        e(f"v_cvt_pk_bf16_f32 v{x+1}, v{x+2}, v{x+3}")
        e(f"v_cvt_pk_bf16_f32 v{x+2}, v{y}, v{y+1}")
        e(f"v_cvt_pk_bf16_f32 v{x+3}, v{y+2}, v{y+3}")
        e(f"ds_write_b128 v{B1 if u&1 else v_ow}, {vr(x,4)}")
    e(f"ds_read_b128 {vr(VS+4*a,4)}, v{A1}")
    e(f"ds_read_b128 {vr(VS+4*(3+a),4)}, v{A1} offset:1024")
if XS:
    c("wave 0: once this workgroup's last loads are out, tell the workgroups that share its L2 and wait (bounded) for theirs")
    e(f"s_cmp_lg_u32 s{s_w}, 0")
    e("s_cbranch_scc1 L_xs_done")
    e(f"v_mov_b32 v{tp}, {FLAGS+128}")
    lab("L_xs_cnt")
    e("s_sleep 1")
    e(f"ds_read_b32 v{tp+1}, v{tp}")
    e("s_waitcnt lgkmcnt(0)")
    e(f"v_readfirstlane_b32 s{s_tmp}, v{tp+1}")
    e(f"s_cmp_lt_u32 s{s_tmp}, 4")
    e("s_cbranch_scc1 L_xs_cnt")
    e(f"s_and_b32 s{s_tmp}, s2, 7")
    e(f"s_lshl_b32 s{s_tmp}, s{s_tmp}, 5")
    e(f"s_lshr_b32 s{s_t2}, s2, 3")
    e(f"s_add_u32 s{s_t2}, s{s_t2}, s{s_tmp}")
    e(f"v_mov_b32 v{tp}, s{s_t2}")
    e(f"v_mov_b32 v{tp+1}, 1")
    e(f"v_lshlrev_b32 v{tp+2}, 2, v{v_l}")
    e(f"v_add_u32 v{tp+2}, s{s_tmp}, v{tp+2}")
    e("s_mov_b64 exec, 1")
    e(f"buffer_store_byte v{tp+1}, v{tp}, s[64:67], 0 offen")
    e("s_mov_b64 exec, 0xff")
    e(f"s_mov_b32 s{s_t2}, {XSTO}")
    lab("L_xs_poll")
    e(f"buffer_load_dword v{tp}, v{tp+2}, s[64:67], 0 offen {XSLD}")
    e("s_waitcnt vmcnt(0)")
    e(f"v_cmp_eq_u32 vcc, 0x01010101, v{tp}")
    e(f"s_sub_u32 s{s_t2}, s{s_t2}, 1")
    e("s_cbranch_scc1 L_xs_out")
    e("s_cmp_lg_u32 vcc_lo, 0xff")
    e("s_cbranch_scc1 L_xs_poll")
    lab("L_xs_out")
    e("s_mov_b64 exec, -1")
    lab("L_xs_done")
if BARPOS == "last":
    e("s_barrier")
elif not NOBAR:
    e(f"s_cmp_eq_u32 s{s_j}, 3")
    e("s_cbranch_scc1 L_st")
    e("s_barrier")
    lab("L_st")
e("s_waitcnt lgkmcnt(0)")
def stores(win, fl):
    for i in range(6):
        b, a = i // 3, i % 3
        o = f" offset:{a*128}" if a else ""
        if win and i >= win: e(f"s_waitcnt vmcnt({win-1})")
        e(f"buffer_store_dwordx4 {vr(VS+4*i,4)}, v{v_G}, s[{sO}:{sO+3}], s{soff[b+1]} offen{o} {fl}".rstrip())
if WGEN < 4:
    e(f"s_cmp_ge_u32 s{s_j}, {WGEN}")
    e("s_cbranch_scc1 L_st3")
    stores(STWIN, STO)
    e("s_branch L_stdone")
    lab("L_st3")
    stores(0, STO3)
    lab("L_stdone")
else:
    stores(STWIN, STO)
L.append(";STAMP 4")
if opts.get("stamp"): e("s_waitcnt vmcnt(0)")
L.append(";STAMP 5")
lab("L_end")
e("s_endpgm")

tail = f""".section .rodata,"a"
.p2align 6
.amdhsa_kernel {NAME}_kernel
  .amdhsa_next_free_vgpr 128
  .amdhsa_next_free_sgpr 70
  .amdhsa_accum_offset 128
  .amdhsa_group_segment_fixed_size 0
  .amdhsa_kernarg_size 48
  .amdhsa_user_sgpr_count 2
  .amdhsa_user_sgpr_kernarg_segment_ptr 1
  .amdhsa_system_sgpr_workgroup_id_x 1
.end_amdhsa_kernel
"""
open(sys.argv[1], "w").write(hdr + "\n" + "\n".join(L) + "\n" + tail)
```

```python
import sys

NAME = "standalone__sliding_local_strided__prompt"
L = []
def e(s): L.append("    " + s)
def lab(s): L.append(s + ":")
def c(s): L.append("    ; " + s)
def vr(b, n): return f"v[{b}:{b+n-1}]"

opts = dict(a.split("=") for a in sys.argv[2:])
LDQ = opts.get("ldq", "nt")
LDK = opts.get("ldk", "nt")
LDH = opts.get("ldh", "")
STO = opts.get("sto", "nt")
BARPOS = opts.get("barpos", "v")
NOBAR = int(opts.get("nobar", "0"))
STWIN = int(opts.get("stwin", "0"))
WGEN = int(opts.get("wgen", "4"))
STO3 = opts.get("sto3", STO)
DSRD = int(opts.get("dsrd", "0"))
XS = int(opts.get("xs", "0"))
XSPOS = opts.get("xspos", "issue")
XSTO = int(opts.get("xsto", "24"))
XSLD = opts.get("xsld", "sc1")
HM = int(opts.get("hm", "0"))
B012 = opts.get("b012", "st")
TH = int(opts.get("th", "0"))
BARODD = opts.get("barodd", "")
TLB = int(opts.get("tlb", "0"))
TMJ = int(opts.get("tm", "0"))
EG0 = int(opts.get("eg0", "0"))

NB = 25165824
RSZ = 39936
FLAGS = 4 * RSZ
LDSB = 160000
sQ, sK, sV, sO = 12, 16, 20, 24
s_w, s_cidx, s_rb, s_offA, s_offB, s_offC, s_hmask, s_j = 28, 29, 30, 31, 32, 33, 34, 35
s_tmp, s_r, s_work, s_hikp, s_hivo, s_hiko, s_hivp, s_t2 = 36, 37, 38, 39, 58, 59, 60, 61
sM = 40
s_scale, s_log2e = 56, 57
v_l, v_G, v_GH, v_l16, v_fr, v_tr, v_ow, v_fl = 1, 2, 3, 4, 5, 6, 7, 8
A0, A1, B0, B1 = 9, 10, 11, 12
tp = 13
P = 16
S = 20
t0, t1, t2, t3 = 28, 29, 30, 31
KS, QS, VS, HR = 32, 56, 80, 104
SA, SB = S, S + 4
def KB(t): return KS + 4 * t
def KA(t): return HR + 4 * t
def QF(t): return QS + 4 * t
def VT(T): return VS + 4 * T
def OA(T): return KS + 4 * T

hdr = f"""; Sliding-window attention (window 8, dilation 4), bf16, B1 H32 S2048 D192.  Generated by work/gen2.py.
; @launch grid=(256,1,1) block=(1024,1,1) lds={LDSB}
;
;   S^T = K.Q^T  (MFMA 16x16x32, own 16 keys + previous 8 keys), band mask, softmax with true row max,
;   O^T = V^T.P^T (V^T fragments via ds_read_b64_tr_b16), O transposed back through LDS for full-line stores.
; Global loads are full 128-byte lines into registers, then swizzled into LDS.  The previous-8-key halo is handed
; All loads of the workgroup are issued before any store: mixed read/write traffic is slower than two phases.
; Block 3 joins that phase barrier while it still computes; dies with an even id (faster writers) join a little later.
.amdgcn_target "amdgcn-amd-amdhsa--gfx950"
.text
.globl {NAME}_kernel
.p2align 8
.type {NAME}_kernel,@function
{NAME}_kernel:"""

e("s_cmp_ge_u32 s2, 256")
e("s_cbranch_scc1 L_end")
L.append(";STAMP 0")
if DSRD:
    e(f"s_load_dwordx2 s[{sK}:{sK+1}], s[0:1], 8")
    e(f"s_load_dwordx2 s[{sV}:{sV+1}], s[0:1], 16")
    e(f"s_load_dwordx2 s[{sQ}:{sQ+1}], s[0:1], 0")
    e(f"s_load_dwordx2 s[{sO}:{sO+1}], s[0:1], 24")
    for srd in (sK, sV, sQ, sO):
        e(f"s_mov_b32 s{srd+2}, {NB}")
        e(f"s_mov_b32 s{srd+3}, 0x00020000")
else:
    e("s_load_dwordx8 s[4:11], s[0:1], 0")
e(f"v_lshrrev_b32 v{v_G}, 6, v0")
e(f"v_and_b32 v{v_l}, 63, v0")
e(f"v_readfirstlane_b32 s{s_w}, v{v_G}")
if TH:
    e("s_memrealtime s[68:69]")
if XS or TH:
    e("s_load_dwordx2 s[64:65], s[0:1], 32")
    e("s_mov_b32 s66, 256")
    e("s_mov_b32 s67, 0x00020000")
c("zero this wave's hand-off flags")
e(f"v_lshlrev_b32 v{v_fl}, 3, v{v_G}")
e(f"v_add_u32 v{v_fl}, {FLAGS}, v{v_fl}")
e(f"v_mov_b32 v{t0}, 0")
e(f"v_mov_b32 v{t1}, 0")
e(f"ds_write_b64 v{v_fl}, {vr(t0,2)}")
if XS:
    e(f"v_mov_b32 v{t2}, {FLAGS+128}")
    e(f"ds_write_b32 v{t2}, v{t0}")
c("tile index: ((b&7)*32 + (b>>3))*4 + j")
if HM:
    e(f"s_and_b32 s{s_cidx}, s2, 7")
    e(f"s_lshl_b32 s{s_cidx}, s{s_cidx}, 3")
    e(f"s_bfe_u32 s{s_tmp}, s2, 0x30003")
    e(f"s_add_u32 s{s_cidx}, s{s_cidx}, s{s_tmp}")
    e(f"s_and_b32 s{s_tmp}, s2, 0xc0")
    e(f"s_add_u32 s{s_cidx}, s{s_cidx}, s{s_tmp}")
else:
    e(f"s_and_b32 s{s_cidx}, s2, 7")
    e(f"s_lshl_b32 s{s_cidx}, s{s_cidx}, 5")
    e(f"s_lshr_b32 s{s_tmp}, s2, 3")
    e(f"s_add_u32 s{s_cidx}, s{s_cidx}, s{s_tmp}")
e(f"s_lshl_b32 s{s_cidx}, s{s_cidx}, 2")
e(f"s_lshr_b32 s{s_j}, s{s_w}, 2")
e(f"s_and_b32 s{s_r}, s{s_w}, 3")
e(f"s_add_u32 s{s_cidx}, s{s_cidx}, s{s_j}")
e(f"s_and_b32 s{s_rb}, s{s_cidx}, 31")
e(f"s_mul_i32 s{s_offB}, s{s_cidx}, 24576")
e(f"s_mul_i32 s{s_tmp}, s{s_r}, 384")
e(f"s_add_u32 s{s_offB}, s{s_offB}, s{s_tmp}")
e(f"s_add_u32 s{s_offC}, s{s_offB}, 12288")
e(f"s_sub_u32 s{s_offA}, s{s_offB}, 12288")
e(f"s_cmp_eq_u32 s{s_rb}, 0")
e(f"s_cselect_b32 s{s_offA}, s{s_offB}, s{s_offA}")
e(f"s_cselect_b32 s{s_hmask}, 64, 8")
e(f"v_lshrrev_b32 v{t2}, 3, v{v_l}")
e(f"v_and_b32 v{t3}, 7, v{v_l}")
e(f"v_and_b32 v{A0}, 6, v{t2}")
e(f"v_xor_b32 v{A0}, v{A0}, v{t3}")
e(f"v_lshlrev_b32 v{A0}, 4, v{A0}")
e(f"v_mul_u32_u24 v{A1}, 1536, v{t2}")
e(f"v_add_u32 v{v_G}, v{A1}, v{A0}")
e(f"v_cmp_gt_u32 vcc, s{s_hmask}, v{v_l}")
e(f"v_or_b32 v{v_GH}, 0x40000000, v{v_G}")
e(f"v_lshlrev_b32 v{v_l16}, 4, v{v_l}")
e(f"v_cndmask_b32 v{v_GH}, v{v_G}, v{v_GH}, vcc")
e("s_waitcnt lgkmcnt(0)")
if not EG0 and not TMJ: e("s_barrier")
for (srd, p) in (() if DSRD else ((sK, 6), (sV, 8), (sQ, 4), (sO, 10))):
    e(f"s_mov_b32 s{srd}, s{p}")
    e(f"s_and_b32 s{srd+1}, s{p+1}, 0xffff")
    e(f"s_mov_b32 s{srd+2}, {NB}")
    e(f"s_mov_b32 s{srd+3}, 0x00020000")
soff = [s_offA, s_offB, s_offC]

def ld(dst, va, srd, so, off, fl):
    o = f" offset:{off}" if off else ""
    e(f"buffer_load_dwordx4 {vr(dst,4)}, v{va}, s[{srd}:{srd+3}], s{so} offen{o} {fl}".rstrip())
e(f"s_cmp_eq_u32 s{s_j}, 0")
e("s_cbranch_scc1 L_halo")
if TLB:
    c("generation 3 touches one word per page of the workgroup's slice of tensor r (address-translation warm-up)")
    e(f"s_cmp_lg_u32 s{s_j}, 3")
    e("s_cbranch_scc1 L_notlb")
    e(f"s_and_b32 s{s_tmp}, s{s_cidx}, 0xfffffc")
    e(f"s_mul_i32 s{s_tmp}, s{s_tmp}, 24576")
    e(f"v_mul_u32_u24 v{t0}, {TLB}, v{v_l}")
    e(f"v_cmp_gt_u32 vcc, {98304}, v{t0}")
    e(f"v_or_b32 v{t1}, 0x40000000, v{t0}")
    e("s_nop 0")
    e(f"v_cndmask_b32 v{t0}, v{t1}, v{t0}, vcc")
    for r, srd in enumerate((sK, sQ, sV, sO)):
        e(f"s_cmp_lg_u32 s{s_r}, {r}")
        e(f"s_cbranch_scc1 L_tlb{r}")
        e(f"buffer_load_dword v{HR}, v{t0}, s[{srd}:{srd+3}], s{s_tmp} offen")
        lab(f"L_tlb{r}")
    lab("L_notlb")
if EG0 and not TMJ: e("s_barrier")
e("s_branch L_nohalo")
lab("L_halo")
for a in range(3): ld(HR + 4 * a, v_GH, sK, soff[0], a * 128, LDH)
for a in range(3): ld(HR + 12 + 4 * a, v_GH, sV, soff[0], a * 128, LDH)
lab("L_nohalo")
for ti, (R, srd, fl) in enumerate(((KS, sK, LDK), (QS, sQ, LDQ), (VS, sV, LDK))):
    if TMJ and ti: e("s_barrier")
    for b in range(2):
        for a in range(3):
            ld(R + 4 * (3 * b + a), v_G, srd, soff[b + 1], a * 128, fl)
if EG0 and not TMJ:
    e(f"s_cmp_lg_u32 s{s_j}, 0")
    e("s_cbranch_scc1 L_eg0")
    e("s_barrier")
    lab("L_eg0")
L.append(";STAMP 1")
def gen3_count():
    e(f"s_cmp_lg_u32 s{s_j}, 3")
    e(f"s_cbranch_scc1 L_nc")
    e(f"v_mov_b32 v{tp}, {FLAGS+128}")
    e(f"v_mov_b32 v{tp+1}, 1")
    e("s_mov_b64 exec, 1")
    e(f"ds_add_u32 v{tp}, v{tp+1}")
    e("s_mov_b64 exec, -1")
    lab("L_nc")
if XS and XSPOS == "issue": gen3_count()
nbar = [0]
def gen3_barrier(key=3):
    if NOBAR: return
    n = nbar[0]; nbar[0] += 1
    e(f"s_cmp_lg_u32 s{62 if BARODD else s_j}, {key}")
    e(f"s_cbranch_scc1 L_nb{n}")
    e("s_barrier")
    lab(f"L_nb{n}")
def g3(pos):
    if BARPOS == pos: gen3_barrier(3)
    if BARODD == pos: gen3_barrier(7)
if BARODD:
    c("scheduling hint only: where block 3 joins the phase barrier depends on the die id parity")
    e("s_getreg_b32 s62, hwreg(HW_REG_XCC_ID)")
    e("s_and_b32 s62, s62, 1")
    e("s_lshl_b32 s62, s62, 2")
    e(f"s_or_b32 s62, s62, s{s_j}")
def bar012():
    e(f"s_cmp_eq_u32 s{s_j}, 3")
    e("s_cbranch_scc1 L_st")
    e("s_barrier")
    lab("L_st")
g3("issue")
c("LDS area bases")
e(f"s_mul_i32 s{s_tmp}, s{s_r}, {RSZ}")
e(f"s_mul_i32 s{s_t2}, s{s_j}, 3072")
e(f"s_add_u32 s{s_hikp}, s{s_tmp}, s{s_t2}")
e(f"s_add_u32 s{s_hiko}, s{s_hikp}, 3072")
e(f"s_add_u32 s{s_work}, s{s_hikp}, 27648")
e(f"s_sub_u32 s{s_hivo}, s{s_tmp}, s{s_t2}")
e(f"s_add_u32 s{s_hivo}, s{s_hivo}, {7*3072}")
e(f"s_add_u32 s{s_hivp}, s{s_hivo}, 3072")
vg, vm = S, S + 1
e(f"v_lshrrev_b32 v{vg}, 4, v{v_l}")
e(f"v_and_b32 v{vm}, 15, v{v_l}")
c("fr = (m&7)*128 + ((g ^ (m&6))*16)")
e(f"v_and_b32 v{t0}, 7, v{vm}")
e(f"v_lshlrev_b32 v{t0}, 7, v{t0}")
e(f"v_and_b32 v{t1}, 6, v{vm}")
e(f"v_xor_b32 v{t1}, v{t1}, v{vg}")
e(f"v_lshl_add_u32 v{v_fr}, v{t1}, 4, v{t0}")
c("ow = WORK + (n>>3)*1024 + (n&7)*128 + ((g ^ (n&7))*16)")
e(f"v_and_b32 v{t1}, 7, v{vm}")
e(f"v_xor_b32 v{t1}, v{t1}, v{vg}")
e(f"v_lshl_add_u32 v{v_ow}, v{t1}, 4, v{t0}")
e(f"v_lshrrev_b32 v{t1}, 3, v{vm}")
e(f"v_lshlrev_b32 v{t1}, 10, v{t1}")
e(f"v_add3_u32 v{v_ow}, v{v_ow}, v{t1}, s{s_work}")
c("tr = (row&7)*128 + ((c ^ (row&6))*16), row = l>>2, c = l&3")
e(f"v_lshrrev_b32 v{t2}, 2, v{v_l}")
e(f"v_and_b32 v{t0}, 7, v{t2}")
e(f"v_lshlrev_b32 v{t0}, 7, v{t0}")
e(f"v_and_b32 v{t1}, 6, v{t2}")
e(f"v_and_b32 v{t3}, 3, v{v_l}")
e(f"v_xor_b32 v{t1}, v{t1}, v{t3}")
e(f"v_lshl_add_u32 v{v_tr}, v{t1}, 4, v{t0}")
c("store offsets: hi3*1536 + ((lo3 ^ hi3)*16) = vG ^ ((hi3&1)*16)")
e(f"v_and_b32 v{t0}, 8, v{v_l}")
e(f"v_lshlrev_b32 v{t0}, 1, v{t0}")
e(f"v_xor_b32 v{v_G}, v{v_G}, v{t0}")
c("masks: dlt = n - 4g ; B valid: (u)(dlt-e) <= 7 ; A valid: (u)(dlt+8-e) <= 7 and g<=1 and rb>0")
e(f"v_lshlrev_b32 v{t0}, 2, v{vg}")
e(f"v_sub_u32 v{t0}, v{vm}, v{t0}")
e(f"v_add_u32 v{t1}, 8, v{t0}")
e(f"s_cmp_eq_u32 s{s_rb}, 0")
e(f"s_cselect_b32 s{s_tmp}, 0, 32")
e(f"v_cmp_gt_u32 vcc, s{s_tmp}, v{v_l}")
e(f"v_mov_b32 v{t2}, 1000")
e(f"s_mov_b32 s{s_scale}, 0x3d93cd3a")
e(f"v_cndmask_b32 v{t1}, v{t2}, v{t1}, vcc")
for ee in range(4):
    e(f"v_subrev_u32 v{t2}, {ee}, v{t1}")
    e(f"v_cmp_ge_u32 s[{sM+2*ee}:{sM+2*ee+1}], 7, v{t2}")
    e(f"v_subrev_u32 v{t3}, {ee}, v{t0}")
    e(f"v_cmp_ge_u32 s[{sM+8+2*ee}:{sM+8+2*ee+1}], 7, v{t3}")
e(f"s_mov_b32 s{s_log2e}, 0x3fb8aa3b")
c("K tile B fragment addresses: (m<8 ? WORK : HIK_own) + fr")
e(f"v_cmp_gt_u32 vcc, 8, v{vm}")
e(f"v_mov_b32 v{t0}, s{s_hiko}")
e(f"v_mov_b32 v{t1}, s{s_work}")
e(f"v_cndmask_b32 v{t0}, v{t0}, v{t1}, vcc")
e(f"v_add_u32 v{B0}, v{t0}, v{v_fr}")
e(f"v_xor_b32 v{B1}, 64, v{B0}")
e(f"v_add_u32 v{A0}, s{s_hikp}, v{v_l16}")
e(f"v_add_u32 v{A1}, s{s_work}, v{v_l16}")
e(f"v_add_u32 v{t2}, s{s_hivo}, v{v_l16}")
e(f"v_mov_b32 v{t3}, 1")
c("halo -> LDS (generation 0 only)")
e(f"s_cmp_lg_u32 s{s_j}, 0")
e("s_cbranch_scc1 L_nohalo2")
e("s_waitcnt vmcnt(18)")
for a in range(3): e(f"ds_write_b128 v{A0}, {vr(HR+4*a,4)} offset:{a*1024}")
for a in range(3): e(f"ds_write_b128 v{t2}, {vr(HR+12+4*a,4)} offset:{3072+a*1024}")
lab("L_nohalo2")
c("K -> LDS -> fragments")
for i in range(6):
    e(f"s_waitcnt vmcnt({17 - i})")
    if i < 3: e(f"ds_write_b128 v{A1}, {vr(KS+4*i,4)} offset:{i*1024}")
    else:     e(f"ds_write_b128 v{A0}, {vr(KS+4*i,4)} offset:{3072+(i-3)*1024}")
L.append(";STAMP 2")
if XS and XSPOS == "k": gen3_count()
g3("k")
for t in range(6):
    e(f"ds_read_b128 {vr(KB(t),4)}, v{B1 if t&1 else B0} offset:{(t>>1)*1024}")
c("the K writes have landed: publish them to the next block")
e("s_waitcnt lgkmcnt(6)")
e(f"ds_write_b32 v{v_fl}, v{t3}")
c("Q fragment addresses: WORK + (m>>3)*1024 + fr")
e(f"v_and_b32 v{t0}, 8, v{v_l}")
e(f"v_lshlrev_b32 v{t0}, 7, v{t0}")
e(f"v_add3_u32 v{B0}, v{t0}, v{v_fr}, s{s_work}")
e(f"v_xor_b32 v{B1}, 64, v{B0}")
c("Q -> LDS -> fragments, three column blocks through the work area")
def QFr(t): return QS + 4 * ((t >> 1) + 3 * (t & 1))
for a in range(3):
    e(f"s_waitcnt vmcnt({11 - a})")
    e(f"ds_write_b128 v{A1}, {vr(QS+4*a,4)}")
    e(f"s_waitcnt vmcnt({8 - a})")
    e(f"ds_write_b128 v{A1}, {vr(QS+4*(3+a),4)} offset:1024")
    e(f"ds_read_b128 {vr(QFr(2*a),4)}, v{B0}")
    e(f"ds_read_b128 {vr(QFr(2*a+1),4)}, v{B1}")
c("wait for the previous generation's K rows")
e(f"v_add_u32 v{B0}, s{s_hikp}, v{v_fr}")
e(f"v_xor_b32 v{B1}, 64, v{B0}")
def flagwait(name, off):
    e(f"s_cmp_eq_u32 s{s_j}, 0")
    e(f"s_cbranch_scc1 {name}_ok")
    e(f"v_subrev_u32 v{t0}, 32, v{v_fl}")
    lab(name)
    e(f"ds_read_b32 v{t1}, v{t0} offset:{off}")
    e("s_waitcnt lgkmcnt(0)")
    e(f"v_readfirstlane_b32 s{s_tmp}, v{t1}")
    e(f"s_cmp_eq_u32 s{s_tmp}, 0")
    e(f"s_cbranch_scc1 {name}")
    lab(name + "_ok")
flagwait("L_wk", 0)
for t in range(6):
    e(f"ds_read_b128 {vr(KA(t),4)}, v{B1 if t&1 else B0} offset:{(t>>1)*1024}")
e("s_waitcnt lgkmcnt(6)")
for t in range(6):
    e(f"v_mfma_f32_16x16x32_bf16 {vr(SB,4)}, {vr(KB(t),4)}, {vr(QFr(t),4)}, {'0' if t==0 else vr(SB,4)}")
for t in range(6):
    e(f"s_waitcnt lgkmcnt({5 - t})")
    e(f"v_mfma_f32_16x16x32_bf16 {vr(SA,4)}, {vr(KA(t),4)}, {vr(QFr(t),4)}, {'0' if t==0 else vr(SA,4)}")
g3("v")
c("V tile B transposed-read addresses: (row<8 ? WORK : HIV_own) + tr ; row<8 <=> lane<32")
e(f"v_cmp_gt_u32 vcc, 32, v{v_l}")
e(f"v_mov_b32 v{t0}, s{s_hivo}")
e(f"v_mov_b32 v{t1}, s{s_work}")
e(f"v_cndmask_b32 v{t0}, v{t0}, v{t1}, vcc")
e(f"v_add_u32 v{B0}, v{t0}, v{v_tr}")
e(f"v_xor_b32 v{B1}, 64, v{B0}")
e(f"v_add_u32 v{A0}, s{s_hivp}, v{v_tr}")
c("V -> LDS -> transposed fragments")
for i in range(6):
    e(f"s_waitcnt vmcnt({5 - i})")
    if i < 3: e(f"ds_write_b128 v{A1}, {vr(VS+4*i,4)} offset:{i*1024}")
    else:     e(f"ds_write_b128 v{t2}, {vr(VS+4*i,4)} offset:{(i-3)*1024}")
L.append(";STAMP 3")
g3("end")
if B012 == "tr": bar012()
e(f"v_xor_b32 v{t2}, 64, v{A0}")
for T in range(12):
    u, hh = T >> 1, T & 1
    e(f"ds_read_b64_tr_b16 {vr(VT(T)+2,2)}, v{B1 if u&1 else B0} offset:{(u>>1)*1024+hh*8}")
c("the V writes have landed: publish them to the next block")
e("s_waitcnt lgkmcnt(12)")
e(f"ds_write_b32 v{v_fl}, v{t3} offset:4")
flagwait("L_wv", 4)
for T in range(12):
    u, hh = T >> 1, T & 1
    e(f"ds_read_b64_tr_b16 {vr(VT(T),2)}, v{t2 if u&1 else A0} offset:{(u>>1)*1024+hh*8}")
c("softmax (scores rounded to bf16 as the reference does)")
for rnd in range(2):
    for j in range(4):
        e(f"v_cvt_pk_bf16_f32 v{P+j}, v{S+2*j}, v{S+2*j+1}")
    for j in range(4):
        e(f"v_lshlrev_b32 v{S+2*j}, 16, v{P+j}")
        e(f"v_and_b32 v{S+2*j+1}, 0xffff0000, v{P+j}")
    if rnd == 0:
        for j in range(8):
            e(f"v_mul_f32 v{S+j}, s{s_scale}, v{S+j}")
e(f"v_mov_b32 v{tp}, 0xff800000")
for j in range(8):
    e(f"v_cndmask_b32 v{S+j}, v{tp}, v{S+j}, s[{sM+2*j}:{sM+2*j+1}]")
e(f"v_max3_f32 v{tp}, v{S}, v{S+1}, v{S+2}")
e(f"v_max3_f32 v{tp+1}, v{S+3}, v{S+4}, v{S+5}")
e(f"v_max3_f32 v{tp}, v{tp}, v{S+6}, v{S+7}")
e(f"v_max_f32 v{tp}, v{tp}, v{tp+1}")
def xlane(op):
    for sw in ("v_permlane16_swap_b32", "v_permlane32_swap_b32"):
        e(f"v_mov_b32 v{tp+1}, v{tp}")
        e("s_nop 1")
        e(f"{sw} v{tp}, v{tp+1}")
        e("s_nop 1")
        e(f"{op} v{tp}, v{tp}, v{tp+1}")
xlane("v_max_f32")
for j in range(8):
    e(f"v_sub_f32 v{S+j}, v{S+j}, v{tp}")
for j in range(8):
    e(f"v_mul_f32 v{S+j}, s{s_log2e}, v{S+j}")
for j in range(8):
    e(f"v_exp_f32 v{S+j}, v{S+j}")
e("s_nop 0")
e(f"v_add_f32 v{tp}, v{S}, v{S+1}")
e(f"v_add_f32 v{tp+1}, v{S+2}, v{S+3}")
e(f"v_add_f32 v{tp+2}, v{S+4}, v{S+5}")
e(f"v_add_f32 v{t0}, v{S+6}, v{S+7}")
e(f"v_add_f32 v{tp}, v{tp}, v{tp+1}")
e(f"v_add_f32 v{tp+2}, v{tp+2}, v{t0}")
e(f"v_add_f32 v{tp}, v{tp}, v{tp+2}")
xlane("v_add_f32")
e(f"v_rcp_f32 v{tp}, v{tp}")
e("s_nop 0")
for j in range(8):
    e(f"v_mul_f32 v{S+j}, v{S+j}, v{tp}")
for j in range(4):
    e(f"v_cvt_pk_bf16_f32 v{P+j}, v{S+2*j}, v{S+2*j+1}")
e(f"v_xor_b32 v{B1}, 64, v{v_ow}")
e("s_nop 0")
g3("pv")
if B012 == "pv": bar012()
c("PV")
for T in range(12):
    e(f"s_waitcnt lgkmcnt({11 - T})")
    e(f"v_mfma_f32_16x16x32_bf16 {vr(OA(T),4)}, {vr(VT(T),4)}, {vr(P,4)}, 0")
e("s_nop 7")
g3("pk")
if B012 == "pk": bar012()
c("pack, transpose through the work area")
for a in range(3):
    for u in (2 * a, 2 * a + 1):
        x, y = OA(2 * u), OA(2 * u + 1)
        e(f"v_cvt_pk_bf16_f32 v{x}, v{x}, v{x+1}")
        e(f"v_cvt_pk_bf16_f32 v{x+1}, v{x+2}, v{x+3}")
        e(f"v_cvt_pk_bf16_f32 v{x+2}, v{y}, v{y+1}")
        e(f"v_cvt_pk_bf16_f32 v{x+3}, v{y+2}, v{y+3}")
        e(f"ds_write_b128 v{B1 if u&1 else v_ow}, {vr(x,4)}")
    e(f"ds_read_b128 {vr(VS+4*a,4)}, v{A1}")
    e(f"ds_read_b128 {vr(VS+4*(3+a),4)}, v{A1} offset:1024")
if XS:
    c("wave 0: once this workgroup's last loads are out, tell the workgroups that share its L2 and wait (bounded) for theirs")
    e(f"s_cmp_lg_u32 s{s_w}, 0")
    e("s_cbranch_scc1 L_xs_done")
    e(f"v_mov_b32 v{tp}, {FLAGS+128}")
    lab("L_xs_cnt")
    e("s_sleep 1")
    e(f"ds_read_b32 v{tp+1}, v{tp}")
    e("s_waitcnt lgkmcnt(0)")
    e(f"v_readfirstlane_b32 s{s_tmp}, v{tp+1}")
    e(f"s_cmp_lt_u32 s{s_tmp}, 4")
    e("s_cbranch_scc1 L_xs_cnt")
    e(f"s_and_b32 s{s_tmp}, s2, 7")
    e(f"s_lshl_b32 s{s_tmp}, s{s_tmp}, 5")
    e(f"s_lshr_b32 s{s_t2}, s2, 3")
    e(f"s_add_u32 s{s_t2}, s{s_t2}, s{s_tmp}")
    e(f"v_mov_b32 v{tp}, s{s_t2}")
    e(f"v_mov_b32 v{tp+1}, 1")
    e(f"v_lshlrev_b32 v{tp+2}, 2, v{v_l}")
    e(f"v_add_u32 v{tp+2}, s{s_tmp}, v{tp+2}")
    e("s_mov_b64 exec, 1")
    e(f"buffer_store_byte v{tp+1}, v{tp}, s[64:67], 0 offen")
    e("s_mov_b64 exec, 0xff")
    e(f"s_mov_b32 s{s_t2}, {XSTO}")
    lab("L_xs_poll")
    e(f"buffer_load_dword v{tp}, v{tp+2}, s[64:67], 0 offen {XSLD}")
    e("s_waitcnt vmcnt(0)")
    e(f"v_cmp_eq_u32 vcc, 0x01010101, v{tp}")
    e(f"s_sub_u32 s{s_t2}, s{s_t2}, 1")
    e("s_cbranch_scc1 L_xs_out")
    e("s_cmp_lg_u32 vcc_lo, 0xff")
    e("s_cbranch_scc1 L_xs_poll")
    lab("L_xs_out")
    e("s_mov_b64 exec, -1")
    lab("L_xs_done")
if TH:
    e(f"s_cmp_lg_u32 s{s_w}, 0")
    e("s_cbranch_scc1 L_th_done")
    lab("L_th_spin")
    e("s_sleep 1")
    e("s_memrealtime s[62:63]")
    e("s_waitcnt lgkmcnt(0)")
    e("s_sub_u32 s62, s62, s68")
    e(f"s_cmp_lt_u32 s62, {TH}")
    e("s_cbranch_scc1 L_th_spin")
    lab("L_th_done")
if BARPOS == "last":
    e("s_barrier")
elif not NOBAR and B012 == "st":
    g3("st")
    bar012()
e("s_waitcnt lgkmcnt(0)")
def stores(win, fl):
    for i in range(6):
        b, a = i // 3, i % 3
        o = f" offset:{a*128}" if a else ""
        if win and i >= win: e(f"s_waitcnt vmcnt({win-1})")
        e(f"buffer_store_dwordx4 {vr(VS+4*i,4)}, v{v_G}, s[{sO}:{sO+3}], s{soff[b+1]} offen{o} {fl}".rstrip())
if WGEN < 4:
    e(f"s_cmp_ge_u32 s{s_j}, {WGEN}")
    e("s_cbranch_scc1 L_st3")
    stores(STWIN, STO)
    e("s_branch L_stdone")
    lab("L_st3")
    stores(0, STO3)
    lab("L_stdone")
else:
    stores(STWIN, STO)
L.append(";STAMP 4")
if opts.get("stamp"): e("s_waitcnt vmcnt(0)")
L.append(";STAMP 5")
lab("L_end")
e("s_endpgm")

tail = f""".section .rodata,"a"
.p2align 6
.amdhsa_kernel {NAME}_kernel
  .amdhsa_next_free_vgpr 128
  .amdhsa_next_free_sgpr {70 if (XS or TH) else 64}
  .amdhsa_accum_offset 128
  .amdhsa_group_segment_fixed_size 0
  .amdhsa_kernarg_size 48
  .amdhsa_user_sgpr_count 2
  .amdhsa_user_sgpr_kernarg_segment_ptr 1
  .amdhsa_system_sgpr_workgroup_id_x 1
.end_amdhsa_kernel
"""
if not opts.get("stamp"): L = [x for x in L if not x.startswith(";STAMP")]
open(sys.argv[1], "w").write(hdr + "\n" + "\n".join(L) + "\n" + tail)
```
